```python
import torch

def _softmax(x, axis=-1):
    return torch.softmax(x, dim=axis)
def _gelu(x):
    return torch.nn.functional.gelu(x, approximate="tanh")
def _silu(x):
    return torch.nn.functional.silu(x)
def _sigmoid(x):
    return torch.sigmoid(x)
def _layernorm(x, axis=-1, eps=1e-5):
    m = x.mean(dim=axis, keepdim=True)
    v = x.var(dim=axis, keepdim=True, unbiased=False)
    return (x - m) / torch.sqrt(v + eps)
def _scatter_add(tgt, idx, src, axis=0):
    return tgt.clone().index_add_(axis, idx, src)
def _segment_sum(src, seg, n):
    out = torch.zeros((n,) + src.shape[1:], dtype=src.dtype)
    return out.index_add_(0, seg, src)
def _pad(x, pw):
    flat = tuple(v for pair in reversed(pw) for v in pair)
    return torch.nn.functional.pad(x, flat)

kernel_name = 'standalone__deepnorm__sampling'

def setup_inputs():

    _w = (lambda a: (lambda t: t.to(torch.bfloat16) if t.is_floating_point() else t)(torch.as_tensor(a)))
    B, S, D = 1024, 16, 512
    return {
        "x": _w((lambda *s: torch.randn(*s, dtype=torch.bfloat16) * 0.05)(B, S, D)),
        "f": _w((lambda *s: torch.randn(*s, dtype=torch.bfloat16) * 0.05)(B, S, D)),
        "g": _w((lambda *s: torch.randn(*s, dtype=torch.bfloat16) * 0.05)(D) + 1.0),
        "b": _w((lambda *s: torch.randn(*s, dtype=torch.bfloat16) * 0.4)(D)),
        "alpha": _w(float(2.0)),
    }

def reference(x, f, g, b, alpha):
    return _layernorm(alpha * x + f, axis=-1) * g + b
```

```python
def head(e):
    e("    s_memrealtime s[40:41]")
    e("    v_readfirstlane_b32 s56, v0")

def stamp(e, i):
    e(f"    s_memrealtime s[{40+2*i}:{41+2*i}]")

def wred(e, op, v, t):
    for sw in ("v_permlane32_swap_b32", "v_permlane16_swap_b32"):
        e(f"    v_mov_b32 v{t}, v{v}")
        e("    s_nop 1")
        e(f"    {sw} v{v}, v{t}")
        e("    s_nop 1")
        e(f"    {op} v{v}, v{v}, v{t}")
    for m in ["quad_perm:[1,0,3,2]", "quad_perm:[2,3,0,1]", "row_half_mirror", "row_mirror"]:
        e("    s_nop 1")
        e(f"    {op}_dpp v{v}, v{v}, v{v} {m} row_mask:0xf bank_mask:0xf")
    e("    s_nop 1")

WBTEST = None
GSEL = None
def tail(e, sel, K, D, W, nwaves, wgreg="s2"):
    e("    s_waitcnt vmcnt(0)")
    e("    s_memrealtime s[50:51]")
    e("    s_load_dwordx4 s[52:55], s[0:1], 48")
    e("    s_getreg_b32 s60, hwreg(HW_REG_HW_ID)")
    e("    s_getreg_b32 s61, hwreg(HW_REG_XCC_ID)")
    e("    s_lshr_b32 s56, s56, 6")
    e(f"    s_mul_i32 s57, {wgreg}, {W}")
    e("    s_add_u32 s56, s56, s57")
    e("    s_lshl_b32 s57, s56, 5")
    e("    s_waitcnt lgkmcnt(0)")
    e("    v_mbcnt_lo_u32_b32 v1, -1, 0")
    e("    v_mbcnt_hi_u32_b32 v1, -1, v1")
    e("    v_lshlrev_b32 v2, 2, v1")
    e("    v_add_u32 v4, s57, v2")
    e("    v_mov_b32 v3, 0")
    for i in range(6):
        e(f"    v_writelane_b32 v3, s{40+2*i}, {i}")
    e("    v_writelane_b32 v3, s60, 6")
    e("    v_writelane_b32 v3, s61, 7")
    e("    s_mov_b64 exec, 0xff")
    e("    global_store_dword v4, v3, s[54:55] sc0 sc1")
    e("    s_mov_b64 exec, -1")
    if D == 0: return
    e("    s_waitcnt vmcnt(0)")
    e("    s_cmp_lg_u32 s56, 0")
    e("    s_cbranch_scc1 L_end")
    e("L_spin1:")
    e("    s_sleep 8")
    e("    s_memrealtime s[58:59]")
    e("    s_waitcnt lgkmcnt(0)")
    e("    s_sub_u32 s58, s58, s40")
    e(f"    s_cmp_lt_u32 s58, {D}")
    e("    s_cbranch_scc1 L_spin1")
    if WBTEST is not None:
        e("    s_memrealtime s[62:63]")
        e("    s_waitcnt lgkmcnt(0)")
        e(f"    buffer_wbl2 {WBTEST}")
        e("    s_waitcnt vmcnt(0)")
        e("    s_memrealtime s[58:59]")
        e("    s_waitcnt lgkmcnt(0)")
        e("    s_sub_u32 s62, s58, s62")
        e(f"    buffer_wbl2 {WBTEST}")
        e("    s_waitcnt vmcnt(0)")
        e("    s_memrealtime s[60:61]")
        e("    s_waitcnt lgkmcnt(0)")
        e("    s_sub_u32 s63, s60, s58")
    for i in range(6):
        e(f"    v_mov_b32 v{16+i}, 0x80000000")
        e(f"    v_mov_b32 v{22+i}, 0x7fffffff")
        e(f"    v_mov_b32 v{28+i}, 0")
    e("    v_lshlrev_b32 v4, 5, v1")
    e(f"    s_mov_b32 s57, {nwaves//64}")
    e("L_gath:")
    e("    global_load_dwordx4 v[8:11], v4, s[54:55] sc0 sc1")
    e("    global_load_dwordx4 v[12:15], v4, s[54:55] offset:16 sc0 sc1")
    e("    v_add_u32 v4, 2048, v4")
    e("    s_waitcnt vmcnt(0)")
    for i in range(6):
        e(f"    v_subrev_u32 v{8+i}, s40, v{8+i}")
        e(f"    v_max_i32 v{16+i}, v{16+i}, v{8+i}")
        e(f"    v_min_i32 v{22+i}, v{22+i}, v{8+i}")
        e(f"    v_add_u32 v{28+i}, v{28+i}, v{8+i}")
    e("    s_sub_u32 s57, s57, 1")
    e("    s_cmp_lg_u32 s57, 0")
    e("    s_cbranch_scc1 L_gath")
    if GSEL is not None:
        e("    s_nop 1")
        e(f"    v_readlane_b32 s63, v{GSEL[0]}, {GSEL[1]}")
        if GSEL[0] >= 28: e(f"    s_ashr_i32 s63, s63, {(nwaves//64).bit_length()-1}")
    for i in range(6):
        wred(e, "v_max_i32", 16+i, 5)
        wred(e, "v_min_i32", 22+i, 5)
        wred(e, "v_add_u32", 28+i, 5)
    sh = nwaves.bit_length() - 1
    for i in range(6):
        e(f"    v_ashrrev_i32 v{28+i}, {sh}, v{28+i}")
    e("    s_nop 1")
    e("    v_readlane_b32 s57, v22, 0")
    e("    s_nop 1")
    for i in range(18):
        e(f"    v_subrev_u32 v{16+i}, s57, v{16+i}")
    e("    s_nop 1")
    out = list(range(16, 28)) + [30, 31, 32, 33]
    for k, v in enumerate(out):
        e(f"    v_readlane_b32 s60, v{v}, 0")
        e("    s_nop 1")
        e(f"    v_writelane_b32 v3, s60, {k}")
    if WBTEST is not None:
        e("    v_writelane_b32 v3, s62, 14")
        e("    v_writelane_b32 v3, s63, 15")
    if GSEL is not None:
        e("    s_sub_u32 s63, s63, s57")
    e(f"    v_readlane_b32 s57, v{16+sel}, 0")
    if GSEL is not None:
        e("    s_mov_b32 s57, s63")
        e("    v_writelane_b32 v3, s63, 15")
    e("    s_mov_b64 exec, 0xffff")
    e("    global_store_dword v2, v3, s[52:53] sc0 sc1")
    e("    s_mov_b64 exec, -1")
    e("    s_min_u32 s57, s57, 5000")
    e(f"    s_mul_i32 s57, s57, {K}")
    e(f"    s_add_u32 s57, s57, {D+8000}")
    e("L_spin2:")
    e("    s_memrealtime s[58:59]")
    e("    s_waitcnt lgkmcnt(0)")
    e("    s_sub_u32 s58, s58, s40")
    e("    s_cmp_lt_u32 s58, s57")
    e("    s_cbranch_scc1 L_spin2")
```

```python
import sys, argparse
import diag as DG

HEADER = """; Kernarg layout for this problem (64 bytes, ptrs only, base s[0:1]):
"""

def gen(R=4, W=4, ldf="", stf="", load_alpha=False, diag=None, nostore=False, wb=0, nw=0, nocomp=False, xact=8, pat=0, xmask=0xff, amask=0, apar=0, wbat=-1, wbn=8, lastsc=0, bar=None, bark=12, noload=False):
    NROWS = 16384
    rows_per_wg = R * W
    nwg = NROWS // rows_per_wg
    if nw: nwg = nw
    L = []
    e = L.append
    e(HEADER.rstrip("\n"))
    e(f"; @launch grid=({nwg},1,1) block=({64*W},1,1) lds=0")
    e('.amdgcn_target "amdgcn-amd-amdhsa--gfx950"')
    e(".text")
    e(".globl standalone__deepnorm__sampling_kernel")
    e(".p2align 8")
    e(".type standalone__deepnorm__sampling_kernel,@function")
    e("standalone__deepnorm__sampling_kernel:")
    if diag:
        DG.head(e)
    e("    s_load_dwordx8 s[4:11], s[0:1], 0")
    e("    s_load_dwordx4 s[12:15], s[0:1], 32")
    e(f"    s_cmp_ge_u32 s2, {nwg}")
    e("    s_cbranch_scc1 L_end")
    lg = (rows_per_wg * 1024).bit_length() - 1
    if pat == 1:
        e("    s_and_b32 s3, s2, 7")
        e(f"    s_mul_i32 s3, s3, {nwg//8}")
        e("    s_lshr_b32 s17, s2, 3")
        e("    s_add_u32 s3, s3, s17")
        e(f"    s_lshl_b32 s3, s3, {lg}")
    elif xmask != 0xff:
        e("    s_getreg_b32 s3, hwreg(HW_REG_XCC_ID, 0, 4)")
        e("    s_bfm_b32 s3, s3, 0")
        e(f"    s_and_b32 s3, s3, {xmask}")
        e("    s_bcnt1_i32_b32 s3, s3")
        e("    s_lshr_b32 s17, s2, 3")
        e(f"    s_mul_i32 s17, s17, {bin(xmask).count('1')}")
        e("    s_add_u32 s3, s3, s17")
        e(f"    s_lshl_b32 s3, s3, {lg}")
    else:
        e(f"    s_lshl_b32 s3, s2, {lg}")
    e("    v_and_b32 v1, 63, v0")
    e("    v_lshlrev_b32 v1, 4, v1            ; lane*16")
    e("    v_lshrrev_b32 v2, 6, v0")
    e(f"    v_lshl_add_u32 v0, v2, {(R*1024).bit_length()-1}, v1")
    if bar is not None:
        e("    v_readfirstlane_b32 s18, v2")
    bias = 4096 if R > 4 else 0
    e(f"    v_add_u32 v0, s3, v0")
    naddr = max(1, (R + 7) // 8)
    AD = [0] + [2 + i for i in range(naddr - 1)]
    if bias:
        e(f"    v_add_u32 v0, {bias}, v0")
    for i in range(1, naddr):
        e(f"    v_add_u32 v{AD[i]}, {8192*i}, v0")
    base = 4
    XF = [base + 8 * r for r in range(R)]
    GB = base + 8 * R
    T = GB + 16
    S = T + 8
    last = S + 8
    def addr(r):
        return AD[r // 8], (r % 8) * 1024 - bias
    e("    s_waitcnt lgkmcnt(0)")
    if diag: e("    s_memrealtime s[42:43]")
    if amask:
        low = amask & -amask
        e("    v_readfirstlane_b32 s3, v0")
        e(f"    s_and_b32 s3, s3, {amask}")
        e("    s_bcnt1_i32_b32 s3, s3")
        e("    s_and_b32 s3, s3, 1")
        e(f"    s_xor_b32 s3, s3, {apar}")
        e(f"    s_mul_i32 s3, s3, {low}")
        e("    v_xor_b32 v0, s3, v0")
    if xmask != 0xff:
        e("    s_getreg_b32 s3, hwreg(HW_REG_XCC_ID, 0, 4)")
        e(f"    s_lshr_b32 s3, {xmask}, s3")
        e("    s_and_b32 s3, s3, 1")
        e("    s_cbranch_scc1 L_go")
        e("    s_memrealtime s[44:45]")
        e("    s_memrealtime s[46:47]")
        e("    s_branch L_skip")
        e("L_go:")
    if xact < 8:
        e("    s_and_b32 s3, s2, 7")
        e(f"    s_cmp_ge_u32 s3, {xact}")
        e("    s_cbranch_scc0 L_go")
        e("    s_memrealtime s[44:45]")
        e("    s_memrealtime s[46:47]")
        e("    s_branch L_skip")
        e("L_go:")
    if load_alpha:
        e("    s_load_dword s16, s[12:13], 0")
    if noload:
        e("    s_memrealtime s[44:45]")
        e("    s_memrealtime s[46:47]")
        for r in range(R):
            a, off = addr(r)
            e(f"    global_store_dwordx4 v{a}, v[{XF[r]}:{XF[r]+3}], s[14:15] offset:{off} {stf}")
        e("    s_branch L_skip")
    if pat == 2:
        for r in range(R):
            a, off = addr(r)
            e(f"    global_load_dwordx4 v[{XF[r]}:{XF[r]+3}], v{a}, s[4:5] offset:{off} {ldf}")
    for r in range(R):
        a, off = addr(r)
        if pat != 2:
            e(f"    global_load_dwordx4 v[{XF[r]}:{XF[r]+3}], v{a}, s[4:5] offset:{off} {ldf}")
        e(f"    global_load_dwordx4 v[{XF[r]+4}:{XF[r]+7}], v{a}, s[6:7] offset:{off} {ldf}")
        if r == 0:
            e(f"    global_load_dwordx4 v[{GB+4}:{GB+7}], v1, s[8:9]")
            e(f"    global_load_dwordx4 v[{GB+12}:{GB+15}], v1, s[10:11]")
    def latebar(tag):
        e(f"    s_cmp_lt_u32 s18, {bark}")
        e(f"    s_cbranch_scc1 L_nb{tag}")
        e("    s_barrier")
        e(f"L_nb{tag}:")
    if bar == -1: latebar("i")
    e("    s_mov_b32 s20, 0xffff0000")
    e("    s_mov_b32 s21, 0x3f803f80          ; bf16 (1.0, 1.0)")
    e("    s_mov_b32 s22, 0x3b000000          ; 1/512")
    e("    s_mov_b32 s23, 0x3727c5ac          ; 1e-5")
    if load_alpha:
        e("    s_waitcnt lgkmcnt(0)")
        e("    s_lshl_b32 s16, s16, 16")
        alpha = "s[16:17]"
    else:
        alpha = "2.0"
    G = min(R, 4)
    def wbtrig(tag):
        e(f"    s_cmp_lt_u32 s2, {nwg-wbn}")
        e(f"    s_cbranch_scc1 L_nowb{tag}")
        e("    v_readfirstlane_b32 s3, v2")
        e("    s_cmp_lg_u32 s3, 0")
        e(f"    s_cbranch_scc1 L_nowb{tag}")
        e("    buffer_wbl2 sc1")
        e(f"L_nowb{tag}:")
    outstanding = 2 * R + 2
    nstores = 0
    first = True
    if nocomp:
        e(f"    s_waitcnt vmcnt({min(2*(R-1),63)})")
        e("    s_memrealtime s[44:45]")
        e(f"    s_waitcnt vmcnt(0)")
        e("    s_memrealtime s[46:47]")
    for g0 in range(0, R, G):
        if nocomp: break
        rows = list(range(g0, g0 + G))
        for k, r in enumerate(rows):
            n = 2 * (R - 1 - r) + nstores
            if r == 0:
                pass
            e(f"    s_waitcnt vmcnt({min(n,63)})")
            if diag and r == 0: e("    s_memrealtime s[44:45]")
            if diag and r == R - 1: e("    s_memrealtime s[46:47]")
            if wbat == r: wbtrig("a")
            if bar == r: latebar("r")
            x = XF[r]; f = x + 4
            for h in range(2):
                for j in range(2):
                    d = 2 * h + j
                    e(f"    v_lshlrev_b32 v{T+2*j}, 16, v{x+d}")
                    e(f"    v_and_b32 v{T+2*j+1}, s20, v{x+d}")
                    e(f"    v_lshlrev_b32 v{T+4+2*j}, 16, v{f+d}")
                    e(f"    v_and_b32 v{T+4+2*j+1}, s20, v{f+d}")
                for j in range(2):
                    e(f"    v_pk_fma_f32 v[{T+2*j}:{T+2*j+1}], v[{T+2*j}:{T+2*j+1}], {alpha}, v[{T+4+2*j}:{T+4+2*j+1}] op_sel_hi:[1,0,1]")
                for j in range(2):
                    e(f"    v_cvt_pk_bf16_f32 v{T+4+j}, v{T+2*j}, v{T+2*j+1}")
                for j in range(2):
                    dst = (x if j == 0 else f) + 2 * h
                    e(f"    v_lshlrev_b32 v{dst}, 16, v{T+4+j}")
                    e(f"    v_and_b32 v{dst+1}, s20, v{T+4+j}")
            e(f"    v_pk_add_f32 v[{T}:{T+1}], v[{x}:{x+1}], v[{x+2}:{x+3}]")
            e(f"    v_pk_add_f32 v[{T+2}:{T+3}], v[{f}:{f+1}], v[{f+2}:{f+3}]")
            e(f"    v_pk_add_f32 v[{T}:{T+1}], v[{T}:{T+1}], v[{T+2}:{T+3}]")
            e(f"    v_add_f32 v{S+k}, v{T}, v{T+1}")
            if first:
                first = False
                e(f"    s_waitcnt vmcnt({min(2*(R-1),63)})")
                for q in range(2):
                    o = GB + 8 * q
                    for d in range(4):
                        e(f"    v_lshlrev_b32 v{o+2*d}, 16, v{o+4+d}") if d < 2 else None
                        e(f"    v_and_b32 v{o+2*d+1}, s20, v{o+4+d}") if d < 2 else None
                    e(f"    v_lshlrev_b32 v{o+4}, 16, v{o+6}")
                    e(f"    v_and_b32 v{o+5}, s20, v{o+6}")
                    e(f"    v_lshlrev_b32 v{o+6}, 16, v{o+7}")
                    e(f"    v_and_b32 v{o+7}, s20, v{o+7}")
        def reduce():
            if G == 4:
                e("    s_nop 1")
                e(f"    v_permlane32_swap_b32 v{S}, v{S+1}")
                e(f"    v_permlane32_swap_b32 v{S+2}, v{S+3}")
                e(f"    v_add_f32 v{S}, v{S}, v{S+1}")
                e(f"    v_add_f32 v{S+2}, v{S+2}, v{S+3}")
                e("    s_nop 1")
                e(f"    v_permlane16_swap_b32 v{S}, v{S+2}")
                e(f"    v_add_f32 v{S}, v{S}, v{S+2}")
                lanes = [0, 32, 16, 48]
            elif G == 2:
                e("    s_nop 1")
                e(f"    v_permlane32_swap_b32 v{S}, v{S+1}")
                e(f"    v_add_f32 v{S}, v{S}, v{S+1}")
                e(f"    v_mov_b32 v{S+2}, v{S}")
                e("    s_nop 1")
                e(f"    v_permlane16_swap_b32 v{S}, v{S+2}")
                e(f"    v_add_f32 v{S}, v{S}, v{S+2}")
                lanes = [0, 32]
            else:
                e(f"    v_mov_b32 v{S+1}, v{S}")
                e("    s_nop 1")
                e(f"    v_permlane32_swap_b32 v{S}, v{S+1}")
                e(f"    v_add_f32 v{S}, v{S}, v{S+1}")
                e(f"    v_mov_b32 v{S+2}, v{S}")
                e("    s_nop 1")
                e(f"    v_permlane16_swap_b32 v{S}, v{S+2}")
                e(f"    v_add_f32 v{S}, v{S}, v{S+2}")
                lanes = [0]
            for m in ["quad_perm:[1,0,3,2]", "quad_perm:[2,3,0,1]", "row_half_mirror", "row_mirror"]:
                e("    s_nop 1")
                e(f"    v_add_f32_dpp v{S}, v{S}, v{S} {m} row_mask:0xf bank_mask:0xf")
            return lanes
        lanes = reduce()
        M = S + 4
        e(f"    v_mul_f32 v{M}, s22, v{S}            ; mean")
        e("    s_nop 0")
        for k in range(G):
            e(f"    v_readlane_b32 s{24+2*k}, v{M}, {lanes[k]}")
        e("    s_nop 1")
        for k, r in enumerate(rows):
            x = XF[r]
            for p in range(4):
                e(f"    v_pk_add_f32 v[{x+2*p}:{x+2*p+1}], v[{x+2*p}:{x+2*p+1}], s[{24+2*k}:{25+2*k}] op_sel_hi:[1,0] neg_lo:[0,1] neg_hi:[0,1]")
            e(f"    v_pk_mul_f32 v[{T}:{T+1}], v[{x}:{x+1}], v[{x}:{x+1}]")
            for p in range(1, 4):
                e(f"    v_pk_fma_f32 v[{T}:{T+1}], v[{x+2*p}:{x+2*p+1}], v[{x+2*p}:{x+2*p+1}], v[{T}:{T+1}]")
            e(f"    v_add_f32 v{S+k}, v{T}, v{T+1}")
        reduce()
        e(f"    v_mul_f32 v{S}, s22, v{S}            ; var")
        e(f"    v_cvt_pk_bf16_f32 v{S+1}, v{S}, v{M}")
        e(f"    v_lshlrev_b32 v{S}, 16, v{S+1}")
        e(f"    v_and_b32 v{S+1}, s20, v{S+1}")
        e(f"    v_add_f32 v{S}, s23, v{S}")
        e(f"    v_sub_f32 v{M}, v{M}, v{S+1}")
        e(f"    v_cvt_pk_bf16_f32 v{S}, v{S}, v{S}")
        e(f"    v_lshlrev_b32 v{S}, 16, v{S}")
        e(f"    v_sqrt_f32 v{S}, v{S}")
        e("    s_nop 0")
        e(f"    v_cvt_pk_bf16_f32 v{S}, v{S}, v{S}")
        e(f"    v_lshlrev_b32 v{S}, 16, v{S}")
        e(f"    v_rcp_f32 v{S}, v{S}")
        e("    s_nop 0")
        e(f"    v_mul_f32 v{M}, v{M}, v{S}")
        for k in range(G):
            e(f"    v_readlane_b32 s{24+2*k}, v{S}, {lanes[k]}")
        for k in range(G):
            e(f"    v_readlane_b32 s{25+2*k}, v{M}, {lanes[k]}")
        e("    s_nop 1")
        for k, r in enumerate(rows):
            x = XF[r]; f = x + 4
            loc = [x, f, x + 2, f + 2]
            for d in range(4):
                p = loc[d]
                e(f"    v_pk_fma_f32 v[{p}:{p+1}], v[{p}:{p+1}], s[{24+2*k}:{25+2*k}], s[{24+2*k}:{25+2*k}] op_sel:[0,0,1] op_sel_hi:[1,0,1]")
            for d in range(4):
                p = loc[d]
                e(f"    v_pk_fma_f32 v[{p}:{p+1}], v[{p}:{p+1}], v[{GB+2*d}:{GB+2*d+1}], v[{GB+8+2*d}:{GB+8+2*d+1}]")
            o = T + 4 * (k % 2)
            for d in range(4):
                p = loc[d]
                e(f"    v_cvt_pk_bf16_f32 v{o+d}, v{p}, v{p+1}")
            a, off = addr(r)
            if bar is not None and r == 0:
                if bar == 99:
                    e("    s_barrier")
                else:
                    e(f"    s_cmp_ge_u32 s18, {bark}")
                    e(f"    s_cbranch_scc1 L_nbs")
                    e("    s_barrier")
                    e(f"L_nbs:")
            if not nostore:
                if lastsc:
                    e(f"    s_cmp_lt_u32 s2, {nwg-lastsc}")
                    e(f"    s_cbranch_scc1 L_pl{r}")
                    e(f"    global_store_dwordx4 v{a}, v[{o}:{o+3}], s[14:15] offset:{off} sc1")
                    e(f"    s_branch L_st{r}")
                    e(f"L_pl{r}:")
                e(f"    global_store_dwordx4 v{a}, v[{o}:{o+3}], s[14:15] offset:{off} {stf}")
                if lastsc: e(f"L_st{r}:")
                nstores += 1
    if wbat == 99: wbtrig("b")
    e("L_skip:")
    if wb:
        e(f"    s_and_b32 s3, s2, {wb-1}")
        e(f"    s_cmp_ge_u32 s3, 8")
        e("    s_cbranch_scc1 L_nowb")
        e("    v_readfirstlane_b32 s3, v2")
        e("    s_cmp_lg_u32 s3, 0")
        e("    s_cbranch_scc1 L_nowb")
        e("    s_waitcnt vmcnt(0)")
        e("    buffer_wbl2 sc1")
        e("L_nowb:")
    if diag:
        e("    s_memrealtime s[48:49]")
        DG.tail(e, diag[0], diag[1], diag[2], W, nwg*W)
        last = max(last, 34)
    e("L_end:")
    e("    s_endpgm")
    e('.section .rodata,"a"')
    e(".p2align 6")
    e(".amdhsa_kernel standalone__deepnorm__sampling_kernel")
    nv = last
    e(f"  .amdhsa_next_free_vgpr {nv}")
    e(f"  .amdhsa_next_free_sgpr {64 if diag else 40}")
    e(f"  .amdhsa_accum_offset {(nv+3)//4*4}")
    e("  .amdhsa_group_segment_fixed_size 0")
    e("  .amdhsa_kernarg_size 64")
    e("  .amdhsa_user_sgpr_count 2")
    e("  .amdhsa_user_sgpr_kernarg_segment_ptr 1")
    e("  .amdhsa_system_sgpr_workgroup_id_x 1")
    e("  .amdhsa_float_denorm_mode_32 3")
    e(".end_amdhsa_kernel")
    return "\n".join(L) + "\n"

if __name__ == "__main__":
    ap = argparse.ArgumentParser()
    ap.add_argument("-R", type=int, default=4)
    ap.add_argument("-W", type=int, default=4)
    ap.add_argument("--ldf", default="")
    ap.add_argument("--stf", default="")
    ap.add_argument("--alpha", action="store_true")
    ap.add_argument("--diag", default=None, help="sel,K,D")
    ap.add_argument("--nostore", action="store_true")
    ap.add_argument("--wb", type=int, default=0)
    ap.add_argument("--nw", type=int, default=0)
    ap.add_argument("--nocomp", action="store_true")
    ap.add_argument("--xact", type=int, default=8)
    ap.add_argument("--pat", type=int, default=0)
    ap.add_argument("--xmask", type=lambda x:int(x,0), default=0xff)
    ap.add_argument("--amask", type=lambda x:int(x,0), default=0)
    ap.add_argument("--apar", type=int, default=0)
    ap.add_argument("--wbat", type=int, default=-1)
    ap.add_argument("--wbn", type=int, default=8)
    ap.add_argument("--lastsc", type=int, default=0)
    ap.add_argument("--bar", type=int, default=None)
    ap.add_argument("--bark", type=int, default=12)
    ap.add_argument("--noload", action="store_true")
    ap.add_argument("-o", required=True)
    a = ap.parse_args()
    open(a.o, "w").write(gen(a.R, a.W, a.ldf, a.stf, a.alpha, [int(t) for t in a.diag.split(",")] if a.diag else None, a.nostore, a.wb, a.nw, a.nocomp, a.xact, a.pat, a.xmask, a.amask, a.apar, a.wbat, a.wbn, a.lastsc, a.bar, a.bark, a.noload))
```

```python
import sys, argparse
import diag as DG
from gen1 import HEADER

def row_compute(e, x, T, P, C, S, GB, fill, O=None):
    if O is None: O = P
    f = x + 4
    for j in range(4):
        e(f"    v_lshlrev_b32 v{T+2*j}, 16, v{f+j}")
        e(f"    v_and_b32 v{T+2*j+1}, 0xffff0000, v{f+j}")
    for j in range(4):
        e(f"    v_dot2c_f32_bf16 v{T+2*j}, s20, v{x+j}")
        e(f"    v_dot2c_f32_bf16 v{T+2*j+1}, s21, v{x+j}")
    e(f"    v_cvt_pk_bf16_f32 v{P}, v{T}, v{T+1}")
    e(f"    v_cvt_pk_bf16_f32 v{P+1}, v{T+2}, v{T+3}")
    e(f"    v_readfirstlane_b32 s24, v{P}")
    e(f"    v_cvt_pk_bf16_f32 v{P+2}, v{T+4}, v{T+5}")
    e(f"    v_cvt_pk_bf16_f32 v{P+3}, v{T+6}, v{T+7}")
    e("    s_lshl_b32 s24, s24, 16")
    for j in range(4):
        e(f"    v_dot2_f32_bf16 v{x+2*j}, v{P+j}, v{C}, s24")
        e(f"    v_dot2_f32_bf16 v{x+2*j+1}, v{P+j}, v{C+1}, s24")
    e(f"    v_pk_mul_f32 v[{T}:{T+1}], v[{x}:{x+1}], v[{x}:{x+1}]")
    e(f"    v_pk_add_f32 v[{T+2}:{T+3}], v[{x}:{x+1}], v[{x+2}:{x+3}]")
    e(f"    v_pk_fma_f32 v[{T}:{T+1}], v[{x+2}:{x+3}], v[{x+2}:{x+3}], v[{T}:{T+1}]")
    e(f"    v_pk_add_f32 v[{T+2}:{T+3}], v[{T+2}:{T+3}], v[{x+4}:{x+5}]")
    e(f"    v_pk_fma_f32 v[{T}:{T+1}], v[{x+4}:{x+5}], v[{x+4}:{x+5}], v[{T}:{T+1}]")
    e(f"    v_pk_add_f32 v[{T+2}:{T+3}], v[{T+2}:{T+3}], v[{x+6}:{x+7}]")
    e(f"    v_pk_fma_f32 v[{T}:{T+1}], v[{x+6}:{x+7}], v[{x+6}:{x+7}], v[{T}:{T+1}]")
    e(f"    v_add_f32 v{S}, v{T+2}, v{T+3}")
    e(f"    v_add_f32 v{S+1}, v{T}, v{T+1}")
    fill = fill()
    def pad2():
        if len(fill) >= 2:
            e(fill.pop(0)); e(fill.pop(0))
        else:
            e("    s_nop 1")
    def pad1():
        e(fill.pop(0) if fill else "    s_nop 0")
    pad2()
    e(f"    v_permlane32_swap_b32 v{S}, v{S+1}")
    e(f"    v_add_f32 v{S}, v{S}, v{S+1}")
    for m in ["quad_perm:[1,0,3,2] row_mask:0xf", "quad_perm:[2,3,0,1] row_mask:0xf", "row_half_mirror row_mask:0xf", "row_mirror row_mask:0xf", "row_bcast:15 row_mask:0xa"]:
        pad2()
        e(f"    v_add_f32_dpp v{S}, v{S}, v{S} {m} bank_mask:0xf")
    pad1()
    e(f"    v_readlane_b32 s25, v{S}, 31")
    e(f"    v_readlane_b32 s26, v{S}, 63")
    pad1()
    e(f"    v_mul_f32 v{S}, s25, v{C+2}           ; K - mean")
    e(f"    v_mul_f32 v{S+1}, s26, v{C+2}")
    e(f"    v_fma_f32 v{S+1}, -v{S}, v{S}, v{S+1}    ; var")
    e(f"    v_cvt_pk_bf16_f32 v{S+1}, 0, v{S+1}")
    e(f"    v_add_f32 v{S+1}, s23, v{S+1}")
    e(f"    v_cvt_pk_bf16_f32 v{S+1}, 0, v{S+1}")
    e(f"    v_sqrt_f32 v{S+1}, v{S+1}")
    e(f"    v_sub_f32 v{S}, s24, v{S}             ; mean")
    e(f"    v_cvt_pk_bf16_f32 v{S+1}, 0, v{S+1}")
    e(f"    v_cvt_pk_bf16_f32 v{S}, 0, v{S}")
    e(f"    v_rcp_f32 v{S+2}, v{S+1}")
    e(f"    v_sub_f32 v{S}, s24, v{S}")
    e(f"    v_mul_f32 v{S+3}, v{S}, v{S+2}")
    while fill: e(fill.pop(0))
    for j in range(4):
        e(f"    v_pk_fma_f32 v[{x+2*j}:{x+2*j+1}], v[{x+2*j}:{x+2*j+1}], v[{S+2}:{S+3}], v[{S+2}:{S+3}] op_sel:[0,0,1] op_sel_hi:[1,0,1] neg_lo:[0,1,0] neg_hi:[0,1,0]")
    for j in range(4):
        e(f"    v_pk_fma_f32 v[{x+2*j}:{x+2*j+1}], v[{x+2*j}:{x+2*j+1}], v[{GB+2*j}:{GB+2*j+1}], v[{GB+8+2*j}:{GB+8+2*j+1}]")
    for j in range(4):
        e(f"    v_cvt_pk_bf16_f32 v{O+j}, v{x+2*j}, v{x+2*j+1}")

def gen(a):
    R, W = a.R, a.W
    nwg = 16384 // (R * W)
    lg = lambda v: v.bit_length() - 1
    stride = nwg * W * 1024
    diag = [int(t) for t in a.diag.split(",")] if a.diag else None
    modes = []
    for m in a.modes.split(";"):
        sch = [int(t) for t in m.split(",")]
        sch += [0] * (R + 1 - len(sch))
        assert sum(sch) == R, m
        modes.append([sum(sch[:k+1]) for k in range(R + 1)])
    M = len(modes)
    assert all(c[0] == modes[0][0] for c in modes)
    NS = min(R, max(c[k+1] - k for c in modes for k in range(R)))
    L = []; e = L.append
    e(HEADER.rstrip("\n"))
    e(f"; @launch grid=({nwg},1,1) block=({64*W},1,1) lds=0")
    e('.amdgcn_target "amdgcn-amd-amdhsa--gfx950"')
    e(".text")
    e(".globl standalone__deepnorm__sampling_kernel")
    e(".p2align 8")
    e(".type standalone__deepnorm__sampling_kernel,@function")
    e("standalone__deepnorm__sampling_kernel:")
    if diag: DG.head(e)
    e("    s_load_dwordx2 s[4:5], s[0:1], 0        ; x")
    e("    s_load_dwordx2 s[8:9], s[0:1], 8        ; f")
    e("    s_load_dwordx4 s[16:19], s[0:1], 16     ; g, b")
    e("    s_load_dwordx2 s[12:13], s[0:1], 40     ; out")
    if a.dyn:
        e("    s_load_dwordx2 s[28:29], s[0:1], 48     ; debug")
        e("    s_memrealtime s[32:33]")
    e(f"    s_cmp_ge_u32 s2, {nwg}")
    e("    s_cbranch_scc1 L_end")
    k = a.xpos
    e(f"    s_and_b32 s27, s2, 7"); e(f"    s_lshl_b32 s27, s27, {k}")
    e(f"    s_bfe_u32 s3, s2, {3 | (k << 16)}"); e("    s_or_b32 s27, s27, s3")
    e(f"    s_andn2_b32 s3, s2, {(1 << (3 + k)) - 1}"); e("    s_or_b32 s27, s27, s3")
    e(f"    s_lshl_b32 s3, s27, {lg(W*1024)}")
    if M > 1: e("    v_readfirstlane_b32 s31, v0")
    e("    v_lshlrev_b32 v1, 4, v0")
    e("    v_add_u32 v0, s3, v1")
    e("    v_and_b32 v1, 0x3ff, v1            ; lane*16")
    for q in (6, 10, 14):
        e(f"    s_mov_b32 s{q}, 0x1000000")
        e(f"    s_mov_b32 s{q+1}, 0x20000")
    for i in range(1, R): e(f"    s_mov_b32 s{64+i}, {i*stride}")
    off = lambda i: f"s{64+i}" if i else "0"
    if M > 1:
        e("    s_lshr_b32 s31, s31, 6")
        e("    s_mov_b32 s30, 0")
    if a.static:
        for spec in a.static.split(";"):
            xm, nw, md = [int(t, 0) for t in spec.split(",")]
            e("    s_and_b32 s3, s2, 7")
            e(f"    s_lshr_b32 s3, {xm}, s3")
            e("    s_and_b32 s3, s3, 1")
            e(f"    s_cmp_lt_u32 s31, {nw}")
            e("    s_cselect_b32 s3, s3, 0")
            e("    s_cmp_lg_u32 s3, 0")
            e(f"    s_cselect_b32 s30, {md}, s30")
    SL = [2 + 8 * q for q in range(NS)]
    GB = 2 + 8 * NS; T = GB + 16; P = T + 8; C = P + 4; S = C + 4; last = S + 6
    K = a.stlag
    OB = [P] if K <= 1 else [last + 4 * q for q in range(K)]
    if K > 1: last += 4 * K
    pend = []
    lastissue = max(i for i in range(R) if any(c[i+1] > c[i] for c in modes)) if any(c[R] > c[0] for c in modes) else -1
    def store(i):
        o = OB[i % len(OB)]
        stf = a.wtf if (a.wtmask >> i) & 1 else ""
        e(f"    buffer_store_dwordx4 v[{o}:{o+3}], v0, s[12:15], {off(i)} offen {stf}")
        for vm in vms: vm.append(("o", i))
    vms = [[] for _ in range(M)]
    def load(i, vm):
        s = SL[i % NS]
        e(f"    buffer_load_dwordx4 v[{s}:{s+3}], v0, s[4:7], {off(i)} offen nt")
        e(f"    buffer_load_dwordx4 v[{s+4}:{s+7}], v0, s[8:11], {off(i)} offen nt")
        vm.extend([("x", i), ("f", i)])
    def wcount(vm, tag):
        if tag not in vm: return None
        idx = max(q for q, t in enumerate(vm) if t == tag)
        n = len(vm) - 1 - idx
        del vm[:idx + 1]
        return n
    e("    s_waitcnt lgkmcnt(0)")
    if diag: DG.stamp(e, 1)
    t = []
    for i in range(modes[0][0]):
        load(i, t)
        if i == 0:
            e(f"    global_load_dwordx4 v[{GB+4}:{GB+7}], v1, s[16:17]")
            e(f"    global_load_dwordx4 v[{GB+12}:{GB+15}], v1, s[18:19]")
            t.extend([("g", 0), ("b", 0)])
    if a.dyn:
        e("    s_lshl_b32 s3, s31, 3")
        e("    s_or_b32 s3, s3, s2")
        e("    s_cmp_ge_u32 s3, 8")
        e("    s_cbranch_scc1 L_nopub")
        e("    s_lshl_b32 s3, s2, 2")
        e("    s_or_b32 s32, s32, 1")
        e(f"    v_mov_b32 v{S+4}, s3")
        e(f"    v_mov_b32 v{S+5}, s32")
        e("    s_mov_b64 exec, 1")
        e(f"    global_store_dword v{S+4}, v{S+5}, s[28:29] sc0 sc1")
        e("    s_mov_b64 exec, -1")
        e("L_nopub:")
    for vm in vms: vm.extend(t)
    e("    s_mov_b32 s20, 0x4000")
    e("    s_mov_b32 s21, 0x40000000")
    e("    s_mov_b32 s23, 0x3727c5ac           ; 1e-5")
    e(f"    v_mov_b32 v{C}, 0xbf80")
    e(f"    v_mov_b32 v{C+1}, 0xbf800000")
    e(f"    v_mov_b32 v{C+2}, 0x3b000000       ; 1/512")
    for i in range(R):
        x = SL[i % NS]
        plans = []
        for m in range(M):
            n = wcount(vms[m], ("f", i))
            plans.append((n, list(range(modes[m][i], modes[m][i+1]))))
        if a.dyn and i == a.dyn + 1:
            n = min(p[0] for p in plans)
            e(f"    s_waitcnt vmcnt({n})")
            dyn_decide(e, a, S)
        groups = {}
        for m, p in enumerate(plans): groups.setdefault((p[0], tuple(p[1])), []).append(m)
        keys = list(groups)
        for gi, key in enumerate(keys):
            lastg = gi == len(keys) - 1
            if not lastg:
                ms = groups[key]
                assert len(ms) == 1 or len(keys) == 2
                if len(ms) == 1:
                    e(f"    s_cmp_lg_u32 s30, {ms[0]}")
                else:
                    e(f"    s_cmp_eq_u32 s30, {groups[keys[1]][0]}")
                e(f"    s_cbranch_scc1 L_m{i}_{gi}")
            if key[0] is not None: e(f"    s_waitcnt vmcnt({key[0]})")
            tmp = []
            for q in key[1]: load(q, tmp)
            for m in groups[key]: vms[m].extend(tmp)
            if not lastg:
                e(f"    s_branch L_j{i}")
                e(f"L_m{i}_{gi}:")
        if len(keys) > 1: e(f"L_j{i}:")
        while pend and (pend[0] <= i - K or i >= lastissue):
            store(pend.pop(0))
        if a.dyn and i == a.dyn:
            e(f"    v_and_b32 v{S+4}, 28, v1")
            e(f"    v_lshrrev_b32 v{S+4}, 2, v1")
            e(f"    v_and_b32 v{S+4}, 28, v{S+4}")
            e(f"    global_load_dword v{S+5}, v{S+4}, s[28:29] sc0 sc1")
            for vm in vms: vm.append(("t", 0))
        if diag and i == 0: DG.stamp(e, 2)
        if diag and i == R - 1: DG.stamp(e, 3)
        def fill():
            if i != 0: return []
            ns = [wcount(vm, ("b", 0)) for vm in vms]
            e(f"    s_waitcnt vmcnt({min(ns)})")
            fl = []
            for q in range(2):
                o = GB + 8 * q
                for d in range(4):
                    fl.append(f"    v_lshlrev_b32 v{o+2*d}, 16, v{o+4+d}")
                    fl.append(f"    v_and_b32 v{o+2*d+1}, 0xffff0000, v{o+4+d}")
            return fl
        row_compute(e, x, T, P, C, S, GB, fill, OB[i % len(OB)])
        if K and i < lastissue: pend.append(i)
        else: store(i)
    if diag:
        DG.stamp(e, 4)
        DG.tail(e, diag[0], diag[1], diag[2], W, nwg * W)
        last = max(last, 34)
    e("L_end:")
    e("    s_endpgm")
    e('.section .rodata,"a"')
    e(".p2align 6")
    e(".amdhsa_kernel standalone__deepnorm__sampling_kernel")
    e(f"  .amdhsa_next_free_vgpr {last}")
    e(f"  .amdhsa_next_free_sgpr {64+R}")
    e(f"  .amdhsa_accum_offset {(last+3)//4*4}")
    e("  .amdhsa_group_segment_fixed_size 0")
    e("  .amdhsa_kernarg_size 64")
    e("  .amdhsa_user_sgpr_count 2")
    e("  .amdhsa_user_sgpr_kernarg_segment_ptr 1")
    e("  .amdhsa_system_sgpr_workgroup_id_x 1")
    e("  .amdhsa_float_denorm_mode_32 3")
    e(".end_amdhsa_kernel")
    return "\n".join(L) + "\n"

def dyn_decide(e, a, S):
    raise NotImplementedError

if __name__ == "__main__":
    ap = argparse.ArgumentParser()
    ap.add_argument("-R", type=int, default=8)
    ap.add_argument("-W", type=int, default=8)
    ap.add_argument("--xpos", type=int, default=1)
    ap.add_argument("--modes", default="2,1,1,1,1,1,1")
    ap.add_argument("--static", default="")
    ap.add_argument("--dyn", type=int, default=0)
    ap.add_argument("--wtmask", type=lambda x: int(x, 0), default=0)
    ap.add_argument("--wtf", default="sc1")
    ap.add_argument("--diag", default=None)
    ap.add_argument("-o", required=True)
    ap.add_argument("--stlag", type=int, default=0)
    ap.add_argument("--gsel", default=None)
    a = ap.parse_args()
    if a.gsel: DG.GSEL = [int(t) for t in a.gsel.split(",")]
    open(a.o, "w").write(gen(a))
```

```python
import sys, argparse
import diag as DG
from gen1 import HEADER
from gen3 import row_compute

def gen(a):
    R, W, k = 8, a.W, a.xpos
    nwg = 16384 // (R * W)
    J = nwg // 8
    lg = lambda v: v.bit_length() - 1
    stride = nwg * W * 1024
    diag = [int(t) for t in a.diag.split(",")] if a.diag else None
    n = a.give
    NE = J * n
    q = -(-NE // 7) if n else 0
    sched = {0: [[0, 1], [2], [3], [4], [5], [6], [7], [], [], []],
             1: [[0, 1], [2], [3], [4], [5], [6], [], [], [], []],
             2: [[0, 1], [2], [3], [4], [5], [6], [7], [], [], []]}
    sched[2][a.xat + 1] = sched[2][a.xat + 1] + [8]
    modes = [0, 1, 2] if n else [0]
    NS = 3
    L = []; e = L.append
    e(HEADER.rstrip("\n"))
    e(f"; @launch grid=({nwg},1,1) block=({64*W},1,1) lds=0")
    e('.amdgcn_target "amdgcn-amd-amdhsa--gfx950"')
    e(".text")
    e(".globl standalone__deepnorm__sampling_kernel")
    e(".p2align 8")
    e(".type standalone__deepnorm__sampling_kernel,@function")
    e("standalone__deepnorm__sampling_kernel:")
    if diag: DG.head(e)
    e("    s_load_dwordx2 s[4:5], s[0:1], 0        ; x")
    e("    s_load_dwordx2 s[8:9], s[0:1], 8        ; f")
    e("    s_load_dwordx4 s[16:19], s[0:1], 16     ; g, b")
    e("    s_load_dwordx2 s[12:13], s[0:1], 40     ; out")
    e(f"    s_cmp_ge_u32 s2, {nwg}")
    e("    s_cbranch_scc1 L_end")
    def chunk(dst, wg, tmp):
        e(f"    s_and_b32 {dst}, {wg}, 7"); e(f"    s_lshl_b32 {dst}, {dst}, {k}")
        e(f"    s_bfe_u32 {tmp}, {wg}, {3 | (k << 16)}"); e(f"    s_or_b32 {dst}, {dst}, {tmp}")
        e(f"    s_andn2_b32 {tmp}, {wg}, {(1 << (3 + k)) - 1}"); e(f"    s_or_b32 {dst}, {dst}, {tmp}")
        e(f"    s_lshl_b32 {dst}, {dst}, {lg(W*1024)}")
    if a.loc >= 0:
        assert W == 4
        e("    s_and_b32 s27, s2, 3"); e("    s_lshl_b32 s27, s27, 2")
        e("    s_bfe_u32 s3, s2, 0x10002"); e(f"    s_xor_b32 s3, s3, {a.loc}"); e("    s_lshl_b32 s3, s3, 1"); e("    s_or_b32 s27, s27, s3")
        e("    s_bfe_u32 s3, s2, 0x10003"); e("    s_or_b32 s27, s27, s3")
        e("    s_andn2_b32 s3, s2, 15"); e("    s_or_b32 s27, s27, s3")
        e("    s_lshl_b32 s27, s27, 12")
        chunk("s26", "s2", "s3")
    else:
        chunk("s27", "s2", "s3")
    if n: e("    v_readfirstlane_b32 s31, v0")
    e("    v_lshlrev_b32 v1, 4, v0")
    e("    v_add_u32 v0, s27, v1")
    if a.loc >= 0: e(f"    v_add_u32 v{2 + 8 * 3 + 16 + 8 + 4 + 4 + 6 + 1}, s26, v1")
    e("    v_and_b32 v1, 0x3ff, v1            ; lane*16")
    for r in (6, 10, 14):
        e(f"    s_mov_b32 s{r}, 0x1000000")
        e(f"    s_mov_b32 s{r+1}, 0x20000")
    for i in range(1, R): e(f"    s_mov_b32 s{64+i}, {i*stride}")
    VO = 2 + 8 * 3 + 16 + 8 + 4 + 4 + 6
    if a.loc >= 0: e(f"    v_xor_b32 v{VO}, 0x2000, v0")
    addr = lambda i: ("v1", "s72") if i == 8 else (f"v{VO+1}" if (a.loc >= 0 and i < a.lock) else f"v{VO}" if (a.loc >= 0 and i & 1 and not a.noflip) else "v0", f"s{64+i}" if i else "0")
    SLX = [2 + 8 * r for r in range(NS)]
    XS = 2 + 8 * NS
    GB = XS + (8 if n else 0); T = GB + 16; P = T + 8; C = P + 4; S = C + 4; last = S + 6
    if a.loc >= 0: last = VO + 2
    slot = lambda i: XS if i == 8 else SLX[i % NS]
    vms = {m: [] for m in modes}
    def load(i, vm):
        s = slot(i); v, so = addr(i)
        e(f"    buffer_load_dwordx4 v[{s}:{s+3}], {v}, s[4:7], {so} offen nt")
        e(f"    buffer_load_dwordx4 v[{s+4}:{s+7}], {v}, s[8:11], {so} offen nt")
        vm.extend([("x", i), ("f", i)])
    def wcount(vm, tag):
        if tag not in vm: return None
        idx = max(r for r, t in enumerate(vm) if t == tag)
        c = len(vm) - 1 - idx
        del vm[:idx + 1]
        return c
    e("    s_waitcnt lgkmcnt(0)")
    if diag: DG.stamp(e, 1)
    t = []
    load(0, t)
    e(f"    global_load_dwordx4 v[{GB+4}:{GB+7}], v1, s[16:17]")
    e(f"    global_load_dwordx4 v[{GB+12}:{GB+15}], v1, s[18:19]")
    t.extend([("g", 0), ("b", 0)])
    load(1, t)
    for vm in vms.values(): vm.extend(t)
    if n:
        e("    s_lshr_b32 s31, s31, 6")
        e(f"    s_sub_u32 s28, s2, {a.gg + 1}")
        e("    s_and_b32 s28, s28, 7")
        e(f"    s_cmp_lt_u32 s31, {n}")
        e("    s_cselect_b32 s30, 1, 0")
        e("    s_cmp_eq_u32 s28, 7")
        e("    s_cselect_b32 s30, s30, 0")
        e("    s_lshr_b32 s29, s2, 3")
        e(f"    s_mul_i32 s28, s28, {q}")
        e("    s_add_u32 s28, s28, s29")
        e(f"    s_cmp_ge_u32 s29, {q}")
        e(f"    s_cselect_b32 s28, {NE}, s28")
        e(f"    s_cmp_lg_u32 s31, {W-1}")
        e(f"    s_cselect_b32 s28, {NE}, s28")
        e(f"    s_cmp_lt_u32 s28, {NE}")
        e("    s_cselect_b32 s30, 2, s30")
        e(f"    s_and_b32 s29, s28, {J-1}")
        e("    s_lshl_b32 s29, s29, 3")
        e(f"    s_or_b32 s29, s29, {a.gg}")
        chunk("s72", "s29", "s3")
        e(f"    s_lshr_b32 s28, s28, {lg(J)}")
        e("    s_lshl_b32 s28, s28, 10")
        e("    s_add_u32 s72, s72, s28")
        e(f"    s_add_u32 s72, s72, {7*stride}")
    e("    s_mov_b32 s20, 0x4000")
    e("    s_mov_b32 s21, 0x40000000")
    e("    s_mov_b32 s23, 0x3727c5ac           ; 1e-5")
    e(f"    v_mov_b32 v{C}, 0xbf80")
    e(f"    v_mov_b32 v{C+1}, 0xbf800000")
    e(f"    v_mov_b32 v{C+2}, 0x3b000000       ; 1/512")
    for i in range(R + (1 if n else 0)):
        x = slot(i)
        live = [m for m in modes if not (m == 1 and i >= 7) and not (m == 0 and i >= 8)]
        if n and i == 7:
            e("    s_cmp_eq_u32 s30, 1"); e("    s_cbranch_scc1 L_done")
        if i == 8:
            e("    s_cmp_lg_u32 s30, 2"); e("    s_cbranch_scc1 L_done")
        groups = {}
        for m in live:
            groups.setdefault((wcount(vms[m], ("f", i)), tuple(sched[m][i + 1])), []).append(m)
        keys = sorted(groups, key=lambda kk: len(groups[kk]))
        for gi, key in enumerate(keys):
            lastg = gi == len(keys) - 1
            if not lastg:
                assert len(groups[key]) == 1
                e(f"    s_cmp_lg_u32 s30, {groups[key][0]}")
                e(f"    s_cbranch_scc1 L_m{i}_{gi}")
            if key[0] is not None: e(f"    s_waitcnt vmcnt({key[0]})")
            tmp = []
            for r in key[1]: load(r, tmp)
            for m in groups[key]: vms[m].extend(tmp)
            if not lastg:
                e(f"    s_branch L_j{i}")
                e(f"L_m{i}_{gi}:")
        if len(keys) > 1: e(f"L_j{i}:")
        if diag and i == 0: DG.stamp(e, 2)
        if diag and i >= R - 2: DG.stamp(e, 3)
        def fill():
            if i != 0: return []
            ns = [wcount(vm, ("b", 0)) for vm in vms.values()]
            e(f"    s_waitcnt vmcnt({min(ns)})")
            fl = []
            for r in range(2):
                o = GB + 8 * r
                for d in range(4):
                    fl.append(f"    v_lshlrev_b32 v{o+2*d}, 16, v{o+4+d}")
                    fl.append(f"    v_and_b32 v{o+2*d+1}, 0xffff0000, v{o+4+d}")
            return fl
        if a.nocomp: continue
        row_compute(e, x, T, P, C, S, GB, fill)
        v, so = addr(i)
        stf = "sc1" if (a.wtmask >> i) & 1 else ""
        e(f"    buffer_store_dwordx4 v[{P}:{P+3}], {v}, s[12:15], {so} offen {stf}")
        for m in live: vms[m].append(("o", i))
    e("L_done:")
    if diag:
        DG.stamp(e, 4)
        DG.tail(e, diag[0], diag[1], diag[2], W, nwg * W)
        last = max(last, 34)
    e("L_end:")
    e("    s_endpgm")
    e('.section .rodata,"a"')
    e(".p2align 6")
    e(".amdhsa_kernel standalone__deepnorm__sampling_kernel")
    e(f"  .amdhsa_next_free_vgpr {last}")
    e(f"  .amdhsa_next_free_sgpr 74")
    e(f"  .amdhsa_accum_offset {(last+3)//4*4}")
    e("  .amdhsa_group_segment_fixed_size 0")
    e("  .amdhsa_kernarg_size 64")
    e("  .amdhsa_user_sgpr_count 2")
    e("  .amdhsa_user_sgpr_kernarg_segment_ptr 1")
    e("  .amdhsa_system_sgpr_workgroup_id_x 1")
    e("  .amdhsa_float_denorm_mode_32 3")
    e(".end_amdhsa_kernel")
    return "\n".join(L) + "\n"

if __name__ == "__main__":
    ap = argparse.ArgumentParser()
    ap.add_argument("-W", type=int, default=8)
    ap.add_argument("--xpos", type=int, default=1)
    ap.add_argument("--give", type=int, default=0)
    ap.add_argument("--gg", type=int, default=0)
    ap.add_argument("--xat", type=int, default=3)
    ap.add_argument("--wtmask", type=lambda x: int(x, 0), default=0)
    ap.add_argument("--diag", default=None)
    ap.add_argument("--gsel", default=None)
    ap.add_argument("-o", required=True)
    ap.add_argument("--loc", type=int, default=-1)
    ap.add_argument("--noflip", action="store_true")
    ap.add_argument("--nocomp", action="store_true")
    ap.add_argument("--lock", type=int, default=0)
    a = ap.parse_args()
    if a.gsel: DG.GSEL = [int(t) for t in a.gsel.split(",")]
    open(a.o, "w").write(gen(a))
```

```python
def head(e):
    e("    s_memrealtime s[40:41]")
    e("    v_readfirstlane_b32 s56, v0")

def stamp(e, i):
    e(f"    s_memrealtime s[{40+2*i}:{41+2*i}]")

def wred(e, op, v, t):
    for sw in ("v_permlane32_swap_b32", "v_permlane16_swap_b32"):
        e(f"    v_mov_b32 v{t}, v{v}")
        e("    s_nop 1")
        e(f"    {sw} v{v}, v{t}")
        e("    s_nop 1")
        e(f"    {op} v{v}, v{v}, v{t}")
    for m in ["quad_perm:[1,0,3,2]", "quad_perm:[2,3,0,1]", "row_half_mirror", "row_mirror"]:
        e("    s_nop 1")
        e(f"    {op}_dpp v{v}, v{v}, v{v} {m} row_mask:0xf bank_mask:0xf")
    e("    s_nop 1")

WBTEST = None
GSEL = None
HOOK = None
def tail(e, sel, K, D, W, nwaves, wgreg="s2"):
    e("    s_waitcnt vmcnt(0)")
    e("    s_memrealtime s[50:51]")
    e("    s_load_dwordx4 s[52:55], s[0:1], 48")
    e("    s_getreg_b32 s60, hwreg(HW_REG_HW_ID)")
    e("    s_getreg_b32 s61, hwreg(HW_REG_XCC_ID)")
    e("    s_lshr_b32 s56, s56, 6")
    e(f"    s_mul_i32 s57, {wgreg}, {W}")
    e("    s_add_u32 s56, s56, s57")
    e("    s_lshl_b32 s57, s56, 5")
    e("    s_waitcnt lgkmcnt(0)")
    e("    v_mbcnt_lo_u32_b32 v1, -1, 0")
    e("    v_mbcnt_hi_u32_b32 v1, -1, v1")
    e("    v_lshlrev_b32 v2, 2, v1")
    e("    v_add_u32 v4, s57, v2")
    e("    v_mov_b32 v3, 0")
    for i in range(6):
        e(f"    v_writelane_b32 v3, s{40+2*i}, {i}")
    e("    v_writelane_b32 v3, s60, 6")
    e("    v_writelane_b32 v3, s61, 7")
    e("    s_mov_b64 exec, 0xff")
    e("    global_store_dword v4, v3, s[54:55] sc0 sc1")
    e("    s_mov_b64 exec, -1")
    if D == 0: return
    e("    s_waitcnt vmcnt(0)")
    e("    s_cmp_lg_u32 s56, 0")
    e("    s_cbranch_scc1 L_end")
    e("L_spin1:")
    e("    s_sleep 8")
    e("    s_memrealtime s[58:59]")
    e("    s_waitcnt lgkmcnt(0)")
    e("    s_sub_u32 s58, s58, s40")
    e(f"    s_cmp_lt_u32 s58, {D}")
    e("    s_cbranch_scc1 L_spin1")
    if WBTEST is not None:
        e("    s_memrealtime s[62:63]")
        e("    s_waitcnt lgkmcnt(0)")
        e(f"    buffer_wbl2 {WBTEST}")
        e("    s_waitcnt vmcnt(0)")
        e("    s_memrealtime s[58:59]")
        e("    s_waitcnt lgkmcnt(0)")
        e("    s_sub_u32 s62, s58, s62")
        e(f"    buffer_wbl2 {WBTEST}")
        e("    s_waitcnt vmcnt(0)")
        e("    s_memrealtime s[60:61]")
        e("    s_waitcnt lgkmcnt(0)")
        e("    s_sub_u32 s63, s60, s58")
    if HOOK is not None: HOOK(e)
    for i in range(6):
        e(f"    v_mov_b32 v{16+i}, 0x80000000")
        e(f"    v_mov_b32 v{22+i}, 0x7fffffff")
        e(f"    v_mov_b32 v{28+i}, 0")
    e("    v_lshlrev_b32 v4, 5, v1")
    e(f"    s_mov_b32 s57, {nwaves//64}")
    e("L_gath:")
    e("    global_load_dwordx4 v[8:11], v4, s[54:55] sc0 sc1")
    e("    global_load_dwordx4 v[12:15], v4, s[54:55] offset:16 sc0 sc1")
    e("    v_add_u32 v4, 2048, v4")
    e("    s_waitcnt vmcnt(0)")
    for i in range(6):
        e(f"    v_subrev_u32 v{8+i}, s40, v{8+i}")
        e(f"    v_max_i32 v{16+i}, v{16+i}, v{8+i}")
        e(f"    v_min_i32 v{22+i}, v{22+i}, v{8+i}")
        e(f"    v_add_u32 v{28+i}, v{28+i}, v{8+i}")
    e("    s_sub_u32 s57, s57, 1")
    e("    s_cmp_lg_u32 s57, 0")
    e("    s_cbranch_scc1 L_gath")
    if GSEL is not None:
        e("    s_nop 1")
        e(f"    v_readlane_b32 s63, v{GSEL[0]}, {GSEL[1]}")
        if GSEL[0] >= 28: e(f"    s_ashr_i32 s63, s63, {(nwaves//64).bit_length()-1}")
    for i in range(6):
        wred(e, "v_max_i32", 16+i, 5)
        wred(e, "v_min_i32", 22+i, 5)
        wred(e, "v_add_u32", 28+i, 5)
    sh = nwaves.bit_length() - 1
    for i in range(6):
        e(f"    v_ashrrev_i32 v{28+i}, {sh}, v{28+i}")
    e("    s_nop 1")
    e("    v_readlane_b32 s57, v22, 0")
    e("    s_nop 1")
    for i in range(18):
        e(f"    v_subrev_u32 v{16+i}, s57, v{16+i}")
    e("    s_nop 1")
    out = list(range(16, 28)) + [30, 31, 32, 33]
    for k, v in enumerate(out):
        e(f"    v_readlane_b32 s60, v{v}, 0")
        e("    s_nop 1")
        e(f"    v_writelane_b32 v3, s60, {k}")
    if WBTEST is not None:
        e("    v_writelane_b32 v3, s62, 14")
        e("    v_writelane_b32 v3, s63, 15")
    if GSEL is not None:
        e("    s_sub_u32 s63, s63, s57")
    e(f"    v_readlane_b32 s57, v{16+sel}, 0")
    if GSEL is not None:
        e("    s_mov_b32 s57, s63")
        e("    v_writelane_b32 v3, s63, 15")
    if HOOK is not None:
        e("    s_mov_b32 s57, s63")
        e("    v_writelane_b32 v3, s63, 13")
        e("    v_writelane_b32 v3, s62, 14")
        e("    v_writelane_b32 v3, s61, 15")
    e("    s_mov_b64 exec, 0xffff")
    e("    global_store_dword v2, v3, s[52:53] sc0 sc1")
    e("    s_mov_b64 exec, -1")
    e("    s_min_u32 s57, s57, 5000")
    e(f"    s_mul_i32 s57, s57, {K}")
    e(f"    s_add_u32 s57, s57, {D+8000}")
    e("L_spin2:")
    e("    s_memrealtime s[58:59]")
    e("    s_waitcnt lgkmcnt(0)")
    e("    s_sub_u32 s58, s58, s40")
    e("    s_cmp_lt_u32 s58, s57")
    e("    s_cbranch_scc1 L_spin2")
```

```python
import sys, argparse
import diag as DG
from gen1 import HEADER
from gen3 import row_compute

def gen(a):
    R, W = 8, 4
    nwg = 512
    stride = 1 << 21
    K = a.k
    diag = [int(t) for t in a.diag.split(",")] if a.diag else None
    sch = [int(t) for t in a.sched.split(",")]
    sch += [0] * (R + 1 - len(sch))
    assert sum(sch) == R
    cum = [sum(sch[:q+1]) for q in range(R + 1)]
    NS = min(R, max(cum[q+1] - q for q in range(R)))
    KI = min(q for q in range(R) if cum[q+1] > K)
    L = []; e = L.append
    e(HEADER.rstrip("\n"))
    e(f"; @launch grid=({nwg},1,1) block=({64*W},1,1) lds=0")
    e('.amdgcn_target "amdgcn-amd-amdhsa--gfx950"')
    e(".text")
    e(".globl standalone__deepnorm__sampling_kernel")
    e(".p2align 8")
    e(".type standalone__deepnorm__sampling_kernel,@function")
    e("standalone__deepnorm__sampling_kernel:")
    if diag: DG.head(e)
    e("    s_load_dwordx2 s[4:5], s[0:1], 0        ; x")
    e("    s_load_dwordx2 s[8:9], s[0:1], 8        ; f")
    e("    s_load_dwordx4 s[16:19], s[0:1], 16     ; g, b")
    e("    s_load_dwordx2 s[12:13], s[0:1], 40     ; out")
    e("    s_load_dwordx4 s[28:31], s[0:1], 32")
    e("    s_load_dwordx2 s[32:33], s[0:1], 48     ; debug")
    e(f"    s_cmp_ge_u32 s2, {nwg}")
    e("    s_cbranch_scc1 L_end")
    SL = [2 + 8 * r for r in range(NS)]
    GB = 2 + 8 * NS; T = GB + 16; P = T + 8; C = P + 4; S = C + 4
    VE, VO, VD, VZ = S + 4, S + 5, S + 6, S + 7
    last = S + 8
    e("    s_and_b32 s27, s2, 7"); e("    s_lshl_b32 s27, s27, 2")
    e("    s_bfe_u32 s3, s2, 0x20003"); e("    s_or_b32 s27, s27, s3")
    e("    s_andn2_b32 s3, s2, 31"); e("    s_or_b32 s27, s27, s3")
    e("    s_lshl_b32 s27, s27, 12")
    e("    v_readfirstlane_b32 s34, v0")
    e(f"    v_lshlrev_b32 v{VE}, 4, v0")
    e(f"    v_add_u32 v0, s27, v{VE}")
    e(f"    v_and_b32 v1, 0x3ff, v{VE}            ; lane*16")
    for r in (6, 10, 14):
        e(f"    s_mov_b32 s{r}, 0x1000000")
        e(f"    s_mov_b32 s{r+1}, 0x20000")
    for i in range(1, R): e(f"    s_mov_b32 s{64+i}, {i*stride}")
    e(f"    s_sub_u32 s35, s2, {a.vw}")
    e("    s_and_b32 s36, s35, 0x27")
    e("    s_or_b32 s36, s36, s34")
    e("    s_bfe_u32 s34, s35, 0x20003")
    e("    s_lshr_b32 s35, s35, 6")
    e("    s_lshl2_add_u32 s34, s35, s34")
    e(f"    s_cmp_ge_u32 s34, {3*a.nv}"); e("    s_cselect_b32 s35, 1, s36")
    e(f"    v_mov_b32 v{VZ}, 0")
    e(f"    v_mov_b32 v{VO}, v0")
    e("    s_movk_i32 s37, 0x1000") if False else None
    addr = lambda i: ("v0" if i < K else f"v{VO}" if i & 1 else f"v{VE}", f"s{64+i}" if i else "0")
    vm = []
    def load(i):
        s = SL[i % NS]; v, so = addr(i)
        e(f"    buffer_load_dwordx4 v[{s}:{s+3}], {v}, s[4:7], {so} offen nt")
        e(f"    buffer_load_dwordx4 v[{s+4}:{s+7}], {v}, s[8:11], {so} offen nt")
        vm.extend([("x", i), ("f", i)])
    def wait(*tags):
        idx = max(r for r, t in enumerate(vm) if t in tags)
        e(f"    s_waitcnt vmcnt({len(vm) - 1 - idx})")
        del vm[:idx + 1]
    e("    s_waitcnt lgkmcnt(0)")
    e("    s_cmp_lg_u32 s35, 0")
    e("    s_cbranch_scc1 L_nopr")
    e("    s_mul_i32 s35, s34, 86"); e("    s_lshr_b32 s35, s35, 8"); e("    s_mul_i32 s3, s35, 3"); e("    s_sub_u32 s26, s34, s3")
    e("    s_cmp_eq_u32 s26, 0"); e("    s_cselect_b64 s[36:37], s[4:5], s[8:9]")
    e("    s_cmp_eq_u32 s26, 2"); e("    s_cselect_b64 s[36:37], s[30:31], s[36:37]")
    e(f"    s_mul_i32 s3, s35, 0x14900")
    e(f"    s_and_b32 s3, s3, 0xfffdf00")
    e(f"    s_add_u32 s3, s3, {a.ppage * stride}")
    e("    s_add_u32 s36, s36, s3")
    e("    s_addc_u32 s37, s37, 0")
    e("    s_mov_b32 s38, 0x7fedcba9")
    e("    s_mov_b32 s39, 0x7fedcba9")
    e("    s_load_dword s38, s[36:37], 0")
    e("    s_load_dword s39, s[36:37], 0x2000")
    if a.touch: e("    s_load_dword s23, s[32:33], 192")
    e("    s_movk_i32 s25, 0x200")
    e("L_race:")
    e("    s_sub_u32 s25, s25, 1")
    e("    s_cbranch_scc1 L_raced")
    e("    s_cmp_eq_u32 s38, 0x7fedcba9")
    e("    s_cbranch_scc1 L_race")
    e("L_raced:")
    for q in range(a.thr - 1): e("    s_nop 0")
    e("    s_cmp_lg_u32 s39, 0x7fedcba9")
    e("    s_cselect_b32 s3, 1, 0")
    e("    s_mov_b32 s24, s34")
    e("    s_lshl_b32 s34, s26, 3")
    e("    s_lshl_b32 s3, s3, s34")
    e("    s_bitset1_b32 s3, 24")
    if a.satom:
        for ln in range(a.lines):
            e(f"    s_atomic_add s3, s[32:33], {60 + 64 * ln if a.lines > 1 else 128}" + (" glc" if a.aret and ln == a.lines - 1 else ""))
        if a.touch or a.aret: e("    s_waitcnt lgkmcnt(0)")
    else:
      e(f"    v_mov_b32 v{T}, s3")
    if a.satom: pass
    elif a.lines > 1:
        e(f"    v_lshlrev_b32 v{T+1}, 2, v1")
        e(f"    s_mov_b64 exec, {(1 << a.lines) - 1}")
        e(f"    global_atomic_add v{T+1}, v{T}, s[32:33] offset:60")
    else:
        e("    s_mov_b64 exec, 1")
        e(f"    global_atomic_add v{VZ}, v{T}, s[32:33] offset:128")
    if a.dbggap:
        e("    s_lshl_b32 s3, s24, 2")
        e(f"    v_mov_b32 v{T+4}, s3"); e(f"    v_mov_b32 v{T+5}, s25")
        e(f"    global_store_dword v{T+4}, v{T+5}, s[32:33] sc0 sc1")
    e("    s_mov_b64 exec, -1")
    e("L_nopr:")
    if diag: DG.stamp(e, 4)
    load(0)
    e(f"    global_load_dwordx4 v[{GB+4}:{GB+7}], v1, s[16:17]")
    e(f"    global_load_dwordx4 v[{GB+12}:{GB+15}], v1, s[18:19]")
    e(f"    global_load_ushort v{VD}, v{VZ}, s[28:29]")
    vm.extend([("g", 0), ("b", 0), ("a", 0)])
    for q in range(1, sch[0]): load(q)
    e("L_novote:")
    e("    s_mov_b32 s23, 0x3727c5ac           ; 1e-5")
    e(f"    v_mov_b32 v{C}, 0xbf80")
    e(f"    v_mov_b32 v{C+1}, 0xbf800000")
    e(f"    v_mov_b32 v{C+2}, 0x3b000000       ; 1/512")
    e("    s_and_b32 s22, s2, 3"); e("    s_lshl_b32 s22, s22, 2")
    e("    s_bfe_u32 s3, s2, 0x10002"); e("    s_lshl_b32 s3, s3, 1"); e("    s_or_b32 s22, s22, s3")
    e("    s_bfe_u32 s3, s2, 0x10003"); e("    s_or_b32 s22, s22, s3")
    e("    s_andn2_b32 s3, s2, 15"); e("    s_or_b32 s22, s22, s3")
    e("    s_lshl_b32 s22, s22, 12")
    def decide():
        if a.nv == 5: e("    s_add_u32 s34, s34, 0x010101"); e("    s_lshr_b32 s34, s34, 1")
        if a.nv == 7: e("    s_lshr_b32 s34, s34, 1")
        e("    s_lshr_b32 s3, s34, 4")
        e("    s_and_b32 s3, s3, 0x2000")
        if a.force >= 0: e(f"    s_mov_b32 s3, {a.force << 13}")
        e("    s_xor_b32 s22, s22, s3")
        e("    s_xor_b32 s3, s22, 0x2000")
        e("    s_and_b32 s34, s34, 0x20202")
        e("    s_cmp_eq_u32 s34, 0x20000"); e("    s_cselect_b32 s35, 1, 0")
        e("    s_cmp_eq_u32 s34, 0x00202"); e("    s_cselect_b32 s35, 1, s35")
        if a.force >= 0: e("    s_mov_b32 s35, 0")
        e("    s_cmp_lg_u32 s35, 0")
        if a.alt == 0:
            e("    s_cselect_b32 s22, s27, s22"); e("    s_cselect_b32 s3, s27, s3")
        else:
            e("    s_cselect_b32 s34, s3, s22"); e("    s_cselect_b32 s3, s22, s3"); e("    s_mov_b32 s22, s34")
        e(f"    v_add_u32 v{VO}, s3, v{VE}")
        e(f"    v_add_u32 v{VE}, s22, v{VE}")
    def check(target):
        e(f"    s_cmp_ge_u32 s34, {(3 * a.nv) << 24}")
        e(f"    s_cbranch_scc{1 if target[0] == '+' else 0} {target[1:]}")
    def rawload(i):
        s_ = SL[i % NS]; v, so = addr(i)
        e(f"    buffer_load_dwordx4 v[{s_}:{s_+3}], {v}, s[4:7], {so} offen nt")
        e(f"    buffer_load_dwordx4 v[{s_+4}:{s_+7}], {v}, s[8:11], {so} offen nt")
    for i in range(R):
        x = SL[i % NS]
        if i == KI and not a.spoll:
            wait(("f", i), ("d", 0))
        else:
            wait(("f", i))
        pre = [q for q in range(cum[i], cum[i+1]) if q < K]
        if i == KI and a.defer:
            assert cum[i+1] - cum[i] == 1 and not pre
            if diag: DG.stamp(e, 1)
            e("    s_load_dword s34, s[32:33], 60")
            e("    s_mov_b32 s26, 0")
            e("    s_waitcnt lgkmcnt(0)")
            check("-L_later")
            if diag: DG.stamp(e, 2)
            decide()
            rawload(K)
            e("    s_mov_b32 s36, 1")
            e("    s_branch L_cont")
            e("L_later:")
            e("    s_mov_b32 s36, 0")
            e("L_cont:")
        elif i == KI:
            for q in pre: load(q)
            if diag: DG.stamp(e, 1)
            if a.spoll:
                if a.lines > 1:
                    for ln in range(a.lines):
                        e(f"    s_load_dword s34, s[32:33], {60 + 64 * ln}")
                        e("    s_waitcnt lgkmcnt(0)")
                        if ln < a.lines - 1:
                            check("+L_have")
                else:
                    e("    s_load_dword s34, s[32:33], 128")
                    e("    s_waitcnt lgkmcnt(0)")
            else:
                e(f"    v_readfirstlane_b32 s34, v{VO}")
            e("    s_movk_i32 s36, 0x200")
            e("L_poll:")
            check("+L_have")
            e("    s_sub_u32 s36, s36, 1")
            e("    s_cbranch_scc1 L_have")
            e(f"    global_load_dword v{VO}, v{VZ}, s[32:33] offset:{60 if a.lines > 1 else 128} sc1")
            e("    s_waitcnt vmcnt(0)")
            e(f"    v_readfirstlane_b32 s34, v{VO}")
            e("    s_branch L_poll")
            e("L_have:")
            if diag: DG.stamp(e, 2)
            decide()
        if i == KI - 1 and not a.spoll:
            e(f"    global_load_dword v{VO}, v{VZ}, s[32:33] offset:{60 if a.lines > 1 else 128} sc1")
            vm.append(("d", 0))
        for q in range(cum[i], cum[i+1]):
            if not (i == KI and (q < K or a.defer)): load(q)
        if i == 0:
            wait(("a", 0))
            e(f"    v_readfirstlane_b32 s20, v{VD}")
            e("    s_lshl_b32 s21, s20, 16")
        if diag and i == R - 1: DG.stamp(e, 3)
        def fill():
            if i != 0: return []
            fl = []
            for r in range(2):
                o = GB + 8 * r
                for d in range(4):
                    fl.append(f"    v_lshlrev_b32 v{o+2*d}, 16, v{o+4+d}")
                    fl.append(f"    v_and_b32 v{o+2*d+1}, 0xffff0000, v{o+4+d}")
            return fl
        row_compute(e, x, T, P, C, S, GB, fill)
        v, so = addr(i)
        stf = "sc1" if (a.wtmask >> i) & 1 else ""
        if (a.dynmask >> i) & 1:
            e("    s_cmp_lg_u32 s35, 0")
            e(f"    s_cbranch_scc1 L_w{i}")
            e(f"    buffer_store_dwordx4 v[{P}:{P+3}], {v}, s[12:15], {so} offen")
            e(f"    s_branch L_x{i}" if (i < R - 1 or diag) else "    s_endpgm")
            e(f"L_w{i}:")
            stf = "sc1"
        e(f"    buffer_store_dwordx4 v[{P}:{P+3}], {v}, s[12:15], {so} offen {stf}")
        if (a.dynmask >> i) & 1: e(f"L_x{i}:")
        vm.append(("o", i))
        if i == KI and a.defer:
            e("    s_cmp_lg_u32 s36, 0")
            e("    s_cbranch_scc1 L_cont2")
            for ln in range(1, a.lines):
                e(f"    s_load_dword s34, s[32:33], {60 + 64 * ln}")
                e("    s_waitcnt lgkmcnt(0)")
                if ln < a.lines - 1: check("+L_have")
            e("    s_movk_i32 s36, 0x200")
            e("L_poll:")
            check("+L_have")
            e("    s_sub_u32 s36, s36, 1")
            e("    s_cbranch_scc1 L_have")
            e(f"    global_load_dword v{VO}, v{VZ}, s[32:33] offset:60 sc1")
            e("    s_waitcnt vmcnt(0)")
            e(f"    v_readfirstlane_b32 s34, v{VO}")
            e("    s_branch L_poll")
            e("L_have:")
            if diag: DG.stamp(e, 2)
            decide()
            load(K)
            e("L_cont2:")
    if diag and a.truth:
        def hook(e):
            e("    s_load_dword s61, s[32:33], 124 glc")
            e("    s_mov_b32 s62, 0")
            for b, p in enumerate(("s[4:5]", "s[8:9]", "s[30:31]")):
                lo = int(p[2:p.index(":")])
                for r in range(7):
                    e(f"    s_add_u32 s36, s{lo}, {4*stride + 0x30300 + r * 0x25100 & ~0x2000}")
                    e(f"    s_addc_u32 s37, s{lo+1}, 0")
                    e("    s_mov_b32 s38, 0x7fedcba9"); e("    s_mov_b32 s39, 0x7fedcba9")
                    e("    s_waitcnt lgkmcnt(0)")
                    e("    s_load_dword s38, s[36:37], 0"); e("    s_load_dword s39, s[36:37], 0x2000")
                    e("    s_movk_i32 s25, 0x200")
                    e(f"L_tr{b}_{r}:")
                    e("    s_sub_u32 s25, s25, 1"); e(f"    s_cbranch_scc1 L_td{b}_{r}")
                    e("    s_cmp_eq_u32 s38, 0x7fedcba9"); e(f"    s_cbranch_scc1 L_tr{b}_{r}")
                    e(f"L_td{b}_{r}:")
                    e("    s_nop 3")
                    e("    s_cmp_lg_u32 s39, 0x7fedcba9")
                    e(f"    s_cselect_b32 s3, {1 << (8*b)}, 0"); e("    s_add_u32 s62, s62, s3")
                    e("    s_waitcnt lgkmcnt(0)")
            e("    s_mov_b32 s63, 0")
            for b in range(3):
                e(f"    s_bfe_u32 s3, s61, {8*b | (8 << 16)}")
                e(f"    s_sub_u32 s25, {a.nv}, s3")
                e(f"    s_bitcmp1_b32 s62, {8*b+2}")
                e("    s_cselect_b32 s3, s25, s3")
                if a.truth == 2:
                    e(f"    s_cmp_gt_u32 s3, {a.nv // 2}"); e("    s_cselect_b32 s3, 1, 0")
                if a.truth == 3:
                    e(f"    s_bfe_u32 s3, s62, {8*b+2 | (1 << 16)}"); e(f"    s_lshl_b32 s3, s3, {b}")
                e("    s_add_u32 s63, s63, s3")
        DG.HOOK = hook
    if diag:
        DG.tail(e, diag[0], diag[1], diag[2], W, nwg * W)
    e("L_end:")
    e("    s_endpgm")
    e('.section .rodata,"a"')
    e(".p2align 6")
    e(".amdhsa_kernel standalone__deepnorm__sampling_kernel")
    e(f"  .amdhsa_next_free_vgpr {last}")
    e(f"  .amdhsa_next_free_sgpr 72")
    e(f"  .amdhsa_accum_offset {(last+3)//4*4}")
    e("  .amdhsa_group_segment_fixed_size 0")
    e("  .amdhsa_kernarg_size 64")
    e("  .amdhsa_user_sgpr_count 2")
    e("  .amdhsa_user_sgpr_kernarg_segment_ptr 1")
    e("  .amdhsa_system_sgpr_workgroup_id_x 1")
    e("  .amdhsa_float_denorm_mode_32 3")
    e(".end_amdhsa_kernel")
    return "\n".join(L) + "\n"

if __name__ == "__main__":
    ap = argparse.ArgumentParser()
    ap.add_argument("-k", type=int, default=4)
    ap.add_argument("--vw", type=int, default=1)
    ap.add_argument("--nv", type=int, default=3)
    ap.add_argument("--truth", type=int, default=0)
    ap.add_argument("--defer", action="store_true")
    ap.add_argument("--touch", action="store_true")
    ap.add_argument("--aret", action="store_true")
    ap.add_argument("--satom", action="store_true")
    ap.add_argument("--dynmask", type=lambda x: int(x, 0), default=0)
    ap.add_argument("--lines", type=int, default=1)
    ap.add_argument("--sched", default="2,1,1,1,1,1,1")
    ap.add_argument("--thr", type=int, default=4)
    ap.add_argument("--ppage", type=int, default=4)
    ap.add_argument("--spoll", action="store_true")
    ap.add_argument("--dbggap", action="store_true")
    ap.add_argument("--force", type=int, default=-1)
    ap.add_argument("--alt", type=int, default=0)
    ap.add_argument("--wtmask", type=lambda x: int(x, 0), default=0x3c)
    ap.add_argument("--diag", default=None)
    ap.add_argument("-o", required=True)
    a = ap.parse_args()
    open(a.o, "w").write(gen(a))
```
